```python
import torch

def _softmax(x, axis=-1):
    return torch.softmax(x, dim=axis)

def _gelu(x):
    return torch.nn.functional.gelu(x, approximate='tanh')

def _silu(x):
    return torch.nn.functional.silu(x)

def _sigmoid(x):
    return torch.sigmoid(x)

def _layernorm(x, axis=-1, eps=1e-05):
    m = x.mean(dim=axis, keepdim=True)
    v = x.var(dim=axis, keepdim=True, unbiased=False)
    return (x - m) / torch.sqrt(v + eps)

def _scatter_add(tgt, idx, src, axis=0):
    return tgt.clone().index_add_(axis, idx, src)

def _segment_sum(src, seg, n):
    out = torch.zeros((n,) + src.shape[1:], dtype=src.dtype)
    return out.index_add_(0, seg, src)

def _pad(x, pw):
    flat = tuple((v for pair in reversed(pw) for v in pair))
    return torch.nn.functional.pad(x, flat)
kernel_name = 'adaLN_cond__gqa_block_cached__glu_gated_geglu__decode'

def setup_inputs():

    _w = lambda a: (lambda t: t.to(torch.bfloat16) if t.is_floating_point() else t)(torch.as_tensor(a))

    def _A_setup():
        B, Sq, D = (2, 1, 512)
        Hq, Hkv, Sk, Dh = (32, 8, 32768, 128)
        assert Hq % Hkv == 0, (Hq, Hkv)
        return {'x': _w((lambda *s: torch.randn(*s, dtype=torch.bfloat16) * 0.05)(B, Sq, D)), 'k_cache': _w((lambda *s: torch.randn(*s, dtype=torch.bfloat16) * 0.8)(B, Hkv, Sk, Dh)), 'v_cache': _w((lambda *s: torch.randn(*s, dtype=torch.bfloat16) * 3.2)(B, Hkv, Sk, Dh)), 'wq': _w((lambda *s: torch.randn(*s, dtype=torch.bfloat16) * 0.8)(D, Hq * Dh) * D ** (-0.5)), 'wo': _w((lambda *s: torch.randn(*s, dtype=torch.bfloat16) * 3.2)(Hq * Dh, D) * (Hq * Dh) ** (-0.5))}
    _A_in = _A_setup()

    def _B_setup():
        B, S, Dm, Df = (2, 1, 512, 1792)
        return {'x': _w((lambda *s: torch.randn(*s, dtype=torch.bfloat16) * 0.05)(B, S, Dm)), 'w_gate': _w((lambda *s: torch.randn(*s, dtype=torch.bfloat16) * 3.2)(Dm, Df) * Dm ** (-0.5)), 'w_up': _w((lambda *s: torch.randn(*s, dtype=torch.bfloat16) * 3.2)(Dm, Df) * Dm ** (-0.5)), 'w_down': _w((lambda *s: torch.randn(*s, dtype=torch.bfloat16) * 3.2)(Df, Dm) * Df ** (-0.5))}
    _B_in = _B_setup()
    return {'A_x': _A_in['x'], 'A_k_cache': _A_in['k_cache'], 'A_v_cache': _A_in['v_cache'], 'A_wq': _A_in['wq'], 'A_wo': _A_in['wo'], 'B_x': _B_in['x'], 'B_w_gate': _B_in['w_gate'], 'B_w_up': _B_in['w_up'], 'B_w_down': _B_in['w_down'], 'c': _w((lambda *s: torch.randn(*s, dtype=torch.bfloat16) * 0.4)(2, 512) * 8.0), 'w_mod': _w((lambda *s: torch.randn(*s, dtype=torch.bfloat16) * 0.4)(512, 6 * 512) * 512 ** (-0.5) * 8.0)}

def reference(A_x, A_k_cache, A_v_cache, A_wq, A_wo, B_x, B_w_gate, B_w_up, B_w_down, c, w_mod):

    def _A_ref(x, k_cache, v_cache, wq, wo):
        B, Sq, D = x.shape
        Hq, Dh = (32, 128)
        Hkv = k_cache.shape[1]
        rep = Hq // Hkv
        q = (lambda x, *d: x.permute(*d))((x @ wq).reshape(B, Sq, Hq, Dh), 0, 2, 1, 3)
        k = (lambda x, n, axis: torch.repeat_interleave(x, n, dim=axis))(k_cache, rep, axis=1)
        v = (lambda x, n, axis: torch.repeat_interleave(x, n, dim=axis))(v_cache, rep, axis=1)
        scores = torch.einsum('bhqd,bhkd->bhqk', q, k) * Dh ** (-0.5)
        p = _softmax(scores, axis=-1)
        o = torch.einsum('bhqk,bhkd->bhqd', p, v)
        return (lambda x, *d: x.permute(*d))(o, 0, 2, 1, 3).reshape(B, Sq, Hq * Dh) @ wo

    def _B_ref(x, w_gate, w_up, w_down):
        g = torch.einsum('bsd,df->bsf', x, w_gate)
        u = torch.einsum('bsd,df->bsf', x, w_up)
        h = _gelu(g) * u
        return torch.einsum('bsf,fd->bsd', h, w_down)
    x = A_x
    mod = (_silu(c) @ w_mod).reshape(c.shape[0], 6, 1, -1)
    sa, ca, ga, sb, cb, gb = (mod[:, 0].clone(), mod[:, 1].clone(), mod[:, 2].clone(), mod[:, 3].clone(), mod[:, 4].clone(), mod[:, 5].clone())
    h = _layernorm(x, axis=-1) * (1 + ca) + sa
    x = x + ga * _A_ref(h, A_k_cache, A_v_cache, A_wq, A_wo)
    h = _layernorm(x, axis=-1) * (1 + cb) + sb
    x = x + gb * _B_ref(h, B_w_gate, B_w_up, B_w_down)
    return x
```

```python
import re

TRANS = ('v_exp_f32', 'v_log_f32', 'v_rcp_f32', 'v_rsq_f32', 'v_sqrt_f32', 'v_sin_f32', 'v_cos_f32')
REG_RE = re.compile(r'^(-|abs\(|\|)?([vsa])(\d+|\[(\d+):(\d+)\])\)?\|?$')

def regs_of(tok):
    tok = tok.strip()
    if tok in ('vcc',): return [('s', 106), ('s', 107)]
    if tok == 'vcc_lo': return [('s', 106)]
    if tok == 'vcc_hi': return [('s', 107)]
    if tok == 'exec': return [('s', 126), ('s', 127)]
    if tok == 'm0': return [('s', 124)]
    m = REG_RE.match(tok)
    if not m: return []
    k = m.group(2)
    if m.group(4) is not None:
        return [(k, i) for i in range(int(m.group(4)), int(m.group(5)) + 1)]
    return [(k, int(m.group(3)))]

class Ins:
    __slots__ = ('text', 'op', 'kind', 'dst', 'src', 'states', 'label', 'target', 'uncond', 'dpp', 'c', 'ab', 'lds', 'wide', 'end', 'passes')
    def __init__(self, text):
        self.text = text
        self.label = None; self.target = None; self.uncond = False; self.end = False
        self.dst = []; self.src = []; self.c = []; self.ab = []
        self.dpp = False; self.lds = False; self.wide = []; self.states = 1; self.passes = 0
        t = text.split(';')[0].strip()
        if t.endswith(':'):
            self.label = t[:-1]; self.kind = 'label'; self.op = ''; self.states = 0; return
        if not t or t.startswith('.'):
            self.kind = 'dir'; self.op = ''; self.states = 0; return
        parts = t.split(None, 1)
        op = parts[0]; self.op = op
        rest = parts[1] if len(parts) > 1 else ''
        ops = [x.strip() for x in re.split(r',(?![^\[]*\])', rest)] if rest else []
        mods = ''
        if ops:
            sp = ops[-1].split(None, 1)
            ops[-1] = sp[0]
            if len(sp) > 1: mods = sp[1]
        R = [regs_of(o) for o in ops]
        if op == 's_nop':
            self.kind = 'salu'; self.states = int(ops[0], 0) + 1; return
        if op.startswith('s_cbranch') or op == 's_branch':
            self.kind = 'branch'; self.target = ops[0]; self.uncond = op == 's_branch'; return
        if op == 's_endpgm':
            self.kind = 'salu'; self.end = True; return
        if op.startswith('v_mfma'):
            self.kind = 'mfma'; self.dst = R[0]; self.ab = R[1] + R[2]; self.c = R[3]; self.src = self.ab + self.c
            self.passes = 8 if '32x32' in op else 4
            return
        if op.startswith('v_'):
            self.kind = 'valu'
            self.dpp = 'dpp' in op or 'quad_perm' in mods or 'row_' in mods
            if op.startswith('v_cmp'):
                self.dst = R[0]; self.src = sum(R[1:], [])
            elif op.startswith('v_permlane') and 'swap' in op:
                self.dst = R[0] + R[1]; self.src = R[0] + R[1]
            elif op.startswith(('v_add_co', 'v_sub_co', 'v_addc_co', 'v_subb_co', 'v_div_scale')):
                self.dst = R[0] + R[1]; self.src = sum(R[2:], [])
            else:
                self.dst = R[0]; self.src = sum(R[1:], [])
                if op.startswith(('v_fmac', 'v_dot2c', 'v_writelane')) or self.dpp: self.src = self.src + R[0] if not self.dpp else self.src
                if op.startswith('v_cndmask') and len(ops) == 3: self.src += regs_of('vcc')
            return
        if op.startswith('ds_'):
            self.kind = 'ds'
            if op.startswith(('ds_read', 'ds_bpermute', 'ds_permute', 'ds_swizzle')) or '_rtn' in op:
                self.dst = R[0]; self.src = sum(R[1:], [])
            else:
                self.src = sum(R, [])
            return
        if op.startswith(('buffer_', 'global_')):
            self.kind = 'vmem'
            allm = mods.split()
            if 'lds' in allm or '_lds_' in op:
                self.lds = True; self.src = sum(R, [])
            elif 'load' in op:
                self.dst = R[0]; self.src = sum(R[1:], [])
            elif 'atomic' in op:
                self.src = sum(R, [])
                if 'sc0' in allm: self.dst = R[0]
            else:
                self.src = sum(R, [])
                if op.endswith(('x3', 'x4')):
                    self.wide = R[0] if op.startswith('buffer_') else R[1]
            return
        self.kind = 'salu'
        if op.startswith(('s_cmp', 's_bitcmp', 's_waitcnt', 's_barrier', 's_sleep', 's_setprio')):
            self.src = sum(R, [])
        else:
            self.dst = R[0] if R else []; self.src = sum(R[1:], [])

CAP = 24
def need(state, ins):
    n = 0
    def req(tbl, regs, k):
        nonlocal n
        for r in regs:
            e = state.get((tbl, r))
            if e is not None:
                el = e if not isinstance(e, tuple) else e[0]
                if el < k: n = max(n, k - el)
    vsrc = [r for r in ins.src if r[0] in 'va']
    ssrc = [r for r in ins.src if r[0] == 's']
    vdst = [r for r in ins.dst if r[0] in 'va']
    def mf(regs, tab):
        nonlocal n
        for r in regs:
            e = state.get(('mfma_d', r))
            if e is not None and e[0] < tab[e[1]]: n = max(n, tab[e[1]] - e[0])
    if ins.kind == 'mfma':
        req('valu_v', vsrc, 2)
        mf(ins.ab, {4: 8, 8: 12})
        for r in ins.c:
            e = state.get(('mfma_d', r))
            if e is not None:
                same = (e[2] == tuple(ins.c)) and e[1] == ins.passes
                k = 0 if same else {4: 6, 8: 10}[e[1]]
                if e[0] < k: n = max(n, k - e[0])
        if not ins.c:
            mf(ins.dst, {4: 8, 8: 12})
    elif ins.kind == 'valu':
        mf(vsrc + vdst, {4: 8, 8: 12})
        for r in vdst:
            e = state.get(('mfma_c', r))
            if e is not None:
                k = {4: 3, 8: 7}[e[1]]
                if e[0] < k: n = max(n, k - e[0])
        if ins.dpp or ins.op.startswith('v_permlane'): req('valu_v', vsrc + (vdst if ins.dpp else []), 2)
        if ins.op.startswith(('v_readlane', 'v_readfirstlane')): req('valu_v', vsrc, 1)
        if ins.op.startswith(('v_readlane', 'v_writelane')): req('valu_s', ssrc, 4)
        if not ins.op.startswith(TRANS): req('trans_v', vsrc, 1)
        req('valu_s', ssrc, 2)
        req('st_data', vdst, 2)
    elif ins.kind in ('vmem', 'ds'):
        mf(vsrc + vdst, {4: 8, 8: 12})
        if ins.kind == 'vmem': req('valu_s', ssrc, 5)
        if ins.lds: req('m0', [('s', 124)], 1)
        req('st_data', vdst, 1)
        req('trans_v', vsrc, 1)
    elif ins.kind in ('salu', 'branch'):
        req('valu_s', ssrc, 1)
    return n

def step(state, ins):
    st = {}
    k = ins.states
    for key, e in state.items():
        if isinstance(e, tuple):
            if e[0] + k < CAP: st[key] = (e[0] + k,) + e[1:]
        elif e + k < CAP: st[key] = e + k
    if ins.kind == 'valu':
        for r in ins.dst:
            if r[0] == 's': st[('valu_s', r)] = 0
            else:
                st[('valu_v', r)] = 0
                st.pop(('mfma_d', r), None)
                if ins.op.startswith(TRANS): st[('trans_v', r)] = 0
                else: st.pop(('trans_v', r), None)
    elif ins.kind == 'mfma':
        for r in ins.dst: st[('mfma_d', r)] = (0, ins.passes, tuple(ins.dst))
        for r in ins.c: st[('mfma_c', r)] = (0, ins.passes)
    elif ins.kind == 'salu':
        if ('s', 124) in ins.dst: st[('m0', ('s', 124))] = 0
        for r in ins.dst: st.pop(('valu_s', r), None)
    elif ins.kind == 'vmem':
        for r in ins.wide: st[('st_data', r)] = 0
    return st

def merge(a, b):
    if a is None: return dict(b), True
    ch = False
    out = dict(a)
    for k, e in b.items():
        if k not in out:
            out[k] = e; ch = True
        else:
            o = out[k]
            if isinstance(e, tuple):
                if e[0] < o[0] or (e[0] == o[0] and e != o and e[1] > o[1]): out[k] = e; ch = True
                elif len(e) == 3 and e[2] != o[2] and o[2] != ():
                    out[k] = (min(e[0], o[0]), max(e[1], o[1]), ()); ch = True
            elif e < o: out[k] = e; ch = True
    return out, ch

def fix(lines):
    ins = [Ins(l) for l in lines]
    total = 0
    for it in range(50):
        lab = {x.label: i for i, x in enumerate(ins) if x.label}
        n = len(ins)
        sin = [None] * (n + 1)
        work = []
        for i, x in enumerate(ins):
            if i == 0 or (x.label and x.label.endswith('_kernel')):
                sin[i] = {}; work.append(i)
        import heapq
        heapq.heapify(work); inq = set(work)
        while work:
            i = heapq.heappop(work); inq.discard(i)
            if i >= n: continue
            x = ins[i]
            so = step(sin[i], x)
            succ = []
            if x.end: succ = []
            elif x.kind == 'branch':
                succ = [lab[x.target]] + ([] if x.uncond else [i + 1])
            else: succ = [i + 1]
            for s in succ:
                m, ch = merge(sin[s], so)
                if ch:
                    sin[s] = m
                    if s not in inq: heapq.heappush(work, s); inq.add(s)
        out = []; added = 0
        for i, x in enumerate(ins):
            if sin[i] is not None and x.kind not in ('label', 'dir'):
                k = need(sin[i], x)
                if k > 0:
                    out.append(Ins(f'  s_nop {k-1}')); added += 1
            out.append(x)
        ins = out; total += added
        if not added: break
    return [x.text for x in ins], total

class Asm:
    def __init__(self):
        self.l = []; self.n = 0
    def __call__(self, s):
        for x in s.split('\n'):
            x = x.strip()
            if not x: continue
            self.l.append(x if x.endswith(':') or x.startswith('.') or x.startswith(';') else '  ' + x)
    def lab(self, p='L'):
        self.n += 1
        return f'{p}_{self.n}'
    def text(self):
        body, n = fix(self.l)
        return '\n'.join(body) + '\n', n
```

```python
import sys
from asmlib import Asm
NAME = 'adaLN_cond__gqa_block_cached__glu_gated_geglu__decode'

EPOCH = 0; MODG = 0x1000; QG = 0x8000; LSEG = 0x10000; T1G = 0x20000; HHG = 0x30000; PART = 0x100000
WS_SIZE = 0x200000
STAMP_OFF = 0x10000000
L_Q = 0x0; L_MISC = 0x400; L_ACT = 0x800; AS = 3648
L_RED = 0x2500; L_STAT = 0x2D00; L_ML = 0x2E00; L_MRG = 0x3000
L_W1 = 0x7000; L_W2 = 0xB000; L_WT1 = 0xF000; L_WT2 = 0x17000; L_RED2 = 0x3000; LDS_TOTAL = 0x25000
P_X, P_K, P_V, P_WQ, P_WO, P_BX, P_WG, P_WU, P_WD, P_C, P_WMOD, P_OUT, P_DBG, P_WS = [32 + 2 * i for i in range(14)]
sTAG, sGRP, sSPL, sB, sKVH, sIDX, sXCD = 60, 61, 62, 63, 64, 65, 66
sT0, sT1, sT2, sT3 = 67, 68, 69, 70
sSEL0, sSEL1, sLOG2E, sSCALE = 71, 72, 73, 74
sCURA, sCURB, sPEND, sSPIN, sHI = 75, 76, 77, 78, 79
sST = 80
NSTREAM = 7
NBLK = 64
SPIN = 100000

def gen(stamps=None, inflight=6, prestream=True, wflags='nt', pf=3, nocomp=0):
    A = Asm()
    def stamp(name):
        if stamps and name in stamps:
            i = stamps.index(name)
            assert i < 11
            if i == 0:
                for j in range(1, 11): A(f's_mov_b64 s[{sST+2*j}:{sST+2*j+1}], 0')
            A(f's_memrealtime s[{sST+2*i}:{sST+2*i+1}]')
    def srd(q, p, size, off=None):
        if off is None:
            A(f's_mov_b32 s{q}, s{p}\ns_mov_b32 s{q+1}, s{p+1}')
        else:
            A(f's_add_u32 s{q}, s{p}, s{off}\ns_addc_u32 s{q+1}, s{p+1}, 0')
        A(f's_mov_b32 s{q+2}, {size}\ns_mov_b32 s{q+3}, 0x20000')
    def rnd(dst, src):
        A(f'v_cvt_pk_bf16_f32 v{dst}, v{src}, v{src}\nv_lshlrev_b32 v{dst}, 16, v{dst}')
    def rnd2(d0, d1, s0, s1, t):
        A(f'v_cvt_pk_bf16_f32 v{t}, v{s0}, v{s1}\nv_lshlrev_b32 v{d0}, 16, v{t}\nv_and_b32 v{d1}, s{sHI}, v{t}')
    def unpack(lo, hi, src):
        A(f'v_lshlrev_b32 v{lo}, 16, v{src}\nv_and_b32 v{hi}, s{sHI}, v{src}')
    def row_allreduce(regs, op):
        for pat in ('quad_perm:[1,0,3,2]', 'quad_perm:[2,3,0,1]', 'row_half_mirror', 'row_mirror'):
            for r in regs:
                A(f'{op}_dpp v{r}, v{r}, v{r} {pat} row_mask:0xf bank_mask:0xf')
    def g_allreduce(regs, tmps, op):
        for sw in ('v_permlane16_swap_b32', 'v_permlane32_swap_b32'):
            for r, t in zip(regs, tmps): A(f'v_mov_b32 v{t}, v{r}')
            for r, t in zip(regs, tmps): A(f'{sw} v{r}, v{t}')
            for r, t in zip(regs, tmps): A(f'{op} v{r}, v{r}, v{t}')
    def allreduce(regs, tmps, op='v_add_f32'):
        row_allreduce(regs, op); g_allreduce(regs, tmps, op)
    def dma_loop(srdq, voff, soff_init_sreg, step, n, lds, pace=None):
        l = A.lab('dma')
        A(f's_mov_b32 s{sT3}, {lds}')
        A(f'{l}:')
        A(f's_mov_b32 m0, s{sT3}')
        A(f'buffer_load_dwordx4 v{voff}, s[{srdq}:{srdq+3}], s{soff_init_sreg} offen {wflags} lds')
        if pace is not None: A(f's_waitcnt vmcnt({pace})')
        A(f's_add_u32 s{soff_init_sreg}, s{soff_init_sreg}, {step}')
        A(f's_add_u32 s{sT3}, s{sT3}, 1024')
        A(f's_cmp_lt_u32 s{sT3}, {lds + n * 1024}')
        A(f's_cbranch_scc1 {l}')
    def tags_ok(tagregs, t0, t1):
        r = tagregs
        assert len(r) >= 3
        A(f'v_min3_u32 v{t0}, v{r[0]}, v{r[1]}, v{r[2]}\nv_max3_u32 v{t1}, v{r[0]}, v{r[1]}, v{r[2]}')
        i = 3
        while i < len(r):
            b = r[i + 1] if i + 1 < len(r) else r[i]
            A(f'v_min3_u32 v{t0}, v{t0}, v{r[i]}, v{b}\nv_max3_u32 v{t1}, v{t1}, v{r[i]}, v{b}')
            i += 2
        A(f'v_xor_b32 v{t0}, s{sTAG}, v{t0}\nv_xor_b32 v{t1}, s{sTAG}, v{t1}\nv_or_b32 v{t0}, v{t0}, v{t1}')
        A(f'v_cmp_ne_u32 vcc, 0, v{t0}')
    def poll_simple(loads, tagregs, t0, t1):
        l = A.lab('poll'); d = A.lab('pdone')
        A(f's_mov_b32 s{sSPIN}, {SPIN}')
        A(f'{l}:')
        loads()
        A('s_waitcnt vmcnt(0)')
        tags_ok(tagregs, t0, t1)
        A(f's_cbranch_vccz {d}')
        A(f's_sub_u32 s{sSPIN}, s{sSPIN}, 1\ns_cmp_lg_u32 s{sSPIN}, 0')
        A(f's_sleep 1')
        A(f's_cbranch_scc1 {l}')
        A(f'{d}:')
    def poll_pend(items):
        l = A.lab('poll'); d = A.lab('pdone')
        n = len(items)
        A(f's_mov_b32 s{sSPIN}, {SPIN}\ns_mov_b32 s{sPEND}, {(1 << n) - 1}')
        A(f'{l}:')
        for p, (ld, tg) in enumerate(items):
            sk = A.lab('sk')
            A(f's_bitcmp1_b32 s{sPEND}, {p}\ns_cbranch_scc0 {sk}\n{ld}\n{sk}:')
        A('s_waitcnt vmcnt(0)')
        for p, (ld, tg) in enumerate(items):
            sk = A.lab('sk')
            A(f'v_cmp_ne_u32 vcc, s{sTAG}, v{tg}\ns_cbranch_vccnz {sk}\ns_bitset0_b32 s{sPEND}, {p}\n{sk}:')
        A(f's_cmp_eq_u32 s{sPEND}, 0\ns_cbranch_scc1 {d}')
        A(f's_sub_u32 s{sSPIN}, s{sSPIN}, 1\ns_cmp_lg_u32 s{sSPIN}, 0')
        A(f's_sleep 1')
        A(f's_cbranch_scc1 {l}')
        A(f'{d}:')
    def div(q, d, den, rden, t):
        A(f'v_mul_f32 v{q}, v{d}, v{rden}\nv_fma_f32 v{t}, -v{q}, v{den}, v{d}\nv_fma_f32 v{q}, v{t}, v{rden}, v{q}')

    A(f'{NAME}_kernel:')
    A('s_cmp_ge_u32 s2, 256\ns_cbranch_scc1 L_end')
    stamp('start')
    A('s_load_dwordx16 s[32:47], s[0:1], 0\ns_load_dwordx8 s[48:55], s[0:1], 64\ns_load_dwordx4 s[56:59], s[0:1], 96')
    A('v_lshrrev_b32 v1, 6, v0\nv_and_b32 v0, 63, v0\nv_readfirstlane_b32 s3, v1')
    A(f's_and_b32 s{sXCD}, s2, 7\ns_lshr_b32 s{sIDX}, s2, 3')
    A(f's_and_b32 s{sT0}, s{sIDX}, 1\ns_lshl_b32 s{sSPL}, s{sXCD}, 1\ns_or_b32 s{sSPL}, s{sSPL}, s{sT0}')
    A(f's_lshr_b32 s{sB}, s{sIDX}, 1\ns_and_b32 s{sB}, s{sB}, 1\ns_lshr_b32 s{sKVH}, s{sIDX}, 2')
    A(f's_lshl_b32 s{sGRP}, s{sB}, 3\ns_add_u32 s{sGRP}, s{sGRP}, s{sKVH}')
    A(f's_mov_b32 s{sSEL0}, 0x05040100\ns_mov_b32 s{sSEL1}, 0x07060302\ns_mov_b32 s{sLOG2E}, 0x3fb8aa3b\ns_mov_b32 s{sSCALE}, 0x3db504f3\ns_mov_b32 s{sHI}, 0xffff0000')
    A(f's_lshl_b32 s{sT0}, s{sGRP}, 4\ns_add_u32 s{sT0}, s{sT0}, s{sSPL}\ns_lshl_b32 s{sT0}, s{sT0}, 19')
    A('s_waitcnt lgkmcnt(0)')
    stamp('karg')
    srd(8, P_K, 0x80000, sT0)
    srd(12, P_V, 0x80000, sT0)
    srd(16, P_WS, WS_SIZE)
    A('s_cmp_eq_u32 s3, 0\ns_cbranch_scc1 L_helper')

    vK0, vK1, vV0, vV1, vTA, vONE, vTK = 1, 2, 3, 4, 5, 6, 7
    Q = 8; O = 24; S = 56; P = 64; T = 68; vM, vL = 76, 77; X = 78
    KA, VA, KB, VB = 96, 128, 160, 192
    A(f'v_and_b32 v{X}, 3, v0\nv_lshlrev_b32 v{X}, 2, v{X}\nv_bfe_u32 v{X+1}, v0, 2, 2\nv_add_u32 v{X}, v{X}, v{X+1}')
    A(f'v_lshlrev_b32 v{X}, 8, v{X}\nv_lshrrev_b32 v{X+1}, 4, v0\nv_lshl_add_u32 v{vK0}, v{X+1}, 4, v{X}\nv_add_u32 v{vK1}, 4096, v{vK0}')
    A(f'v_lshlrev_b32 v{vV0}, 4, v0\nv_add_u32 v{vV1}, 4096, v{vV0}')
    A(f'v_mov_b32 v{vTA}, {L_MISC}\nv_mov_b32 v{vONE}, 1')
    def kload(base, j, so):
        tau, t = j >> 2, j & 3
        return f'buffer_load_dwordx4 v[{base+4*j}:{base+4*j+3}], v{vK1 if tau else vK0}, s[8:11], s{so} offen offset:{64*t} nt'
    def vload(base, e, so):
        return f'buffer_load_dwordx4 v[{base+4*e}:{base+4*e+3}], v{vV1 if e >= 4 else vV0}, s[12:15], s{so} offen offset:{1024*(e&3)} nt'
    A(f's_sub_u32 s{sCURA}, s3, 1\ns_add_u32 s{sCURB}, s{sCURA}, {NSTREAM}')
    A(f's_lshl_b32 s{sT0}, s{sCURA}, 13\ns_lshl_b32 s{sT1}, s{sCURB}, 13')
    seq = [kload(KA, j, sT0) for j in range(8)] + [vload(VA, e, sT0) for e in range(8)] + \
          [kload(KB, j, sT1) for j in range(8)] + [vload(VB, e, sT1) for e in range(8)]
    if not prestream: A('s_barrier')
    for i, ld in enumerate(seq):
        if i >= inflight and prestream: A(f's_waitcnt vmcnt({inflight-1})')
        A(ld)
    for r in range(32): A(f'v_mov_b32 v{O+r}, 0')
    A(f'v_mov_b32 v{vM}, 0xff800000\nv_mov_b32 v{vL}, 0')
    A(f'v_and_b32 v{X}, 3, v0\nv_lshlrev_b32 v{X}, 8, v{X}\nv_lshrrev_b32 v{X+1}, 4, v0\nv_lshl_add_u32 v{X}, v{X+1}, 4, v{X}')
    if prestream: A('s_barrier')
    for t in range(4): A(f'ds_read_b128 v[{Q+4*t}:{Q+4*t+3}], v{X} offset:{L_Q+64*t}')
    A(f'ds_read_b32 v{X+1}, v{vTA} offset:4')
    A(f's_waitcnt lgkmcnt(0)\nv_readfirstlane_b32 s{sTAG}, v{X+1}')
    def block(Kb, Vb, sCUR):
        A(f's_cmp_ge_u32 s{sCUR}, {NBLK}\ns_cbranch_scc1 L_sdone')
        A(f's_mov_b64 exec, 1\nds_add_rtn_u32 v{vTK}, v{vTA}, v{vONE}\ns_mov_b64 exec, -1')
        A('s_waitcnt vmcnt(24)')
        for t in range(4):
            for tau in range(2):
                if nocomp: continue
                k = Kb + 4 * (tau * 4 + t)
                c = '0' if t == 0 else f'v[{S+4*tau}:{S+4*tau+3}]'
                A(f'v_mfma_f32_16x16x32_bf16 v[{S+4*tau}:{S+4*tau+3}], v[{k}:{k+3}], v[{Q+4*t}:{Q+4*t+3}], {c}')
        A(f's_waitcnt lgkmcnt(0)\nv_readfirstlane_b32 s{sCUR}, v{vTK}\ns_lshl_b32 s{sT0}, s{sCUR}, 13')
        A(f's_cmp_lt_u32 s{sCUR}, {NBLK}\ns_cselect_b32 s10, 0x80000, 0\ns_cselect_b32 s14, 0x80000, 0\ns_cselect_b32 s{sT0}, s{sT0}, 0')
        for j in range(8): A(kload(Kb, j, sT0))
        if nocomp:
            A('s_waitcnt vmcnt(24)')
            for e in range(8): A(vload(Vb, e, sT0))
            return
        for i in range(4): A(f'v_cvt_pk_bf16_f32 v{X+i}, v{S+2*i}, v{S+2*i+1}')
        for i in range(4): unpack(S + 2 * i, S + 2 * i + 1, X + i)
        for i in range(8): A(f'v_mul_f32 v{S+i}, s{sSCALE}, v{S+i}')
        for i in range(4): A(f'v_cvt_pk_bf16_f32 v{X+i}, v{S+2*i}, v{S+2*i+1}')
        for i in range(4): unpack(S + 2 * i, S + 2 * i + 1, X + i)
        mx, tm, al, nm = X + 4, X + 5, X + 6, X + 7
        A(f'v_max3_f32 v{mx}, v{S}, v{S+1}, v{S+2}\nv_max3_f32 v{tm}, v{S+3}, v{S+4}, v{S+5}\nv_max3_f32 v{mx}, v{mx}, v{S+6}, v{S+7}\nv_max3_f32 v{mx}, v{mx}, v{tm}, v{vM}')
        g_allreduce([mx], [tm], 'v_max_f32')
        A(f'v_sub_f32 v{al}, v{vM}, v{mx}\nv_mul_f32 v{nm}, s{sLOG2E}, v{mx}\nv_mul_f32 v{al}, s{sLOG2E}, v{al}\nv_mov_b32 v{vM}, v{mx}\nv_exp_f32 v{al}, v{al}')
        for i in range(8): A(f'v_fma_f32 v{S+i}, v{S+i}, s{sLOG2E}, -v{nm}')
        for i in range(8): A(f'v_exp_f32 v{S+i}, v{S+i}')
        A(f'v_mul_f32 v{vL}, v{vL}, v{al}')
        for r in range(32): A(f'v_mul_f32 v{O+r}, v{O+r}, v{al}')
        for i in range(4): A(f'v_cvt_pk_bf16_f32 v{P+i}, v{S+2*i}, v{S+2*i+1}')
        for i in range(4): A(f'v_add_f32 v{X+i}, v{S+2*i}, v{S+2*i+1}')
        A(f'v_add_f32 v{X}, v{X}, v{X+1}\nv_add_f32 v{X+2}, v{X+2}, v{X+3}\nv_add_f32 v{vL}, v{vL}, v{X}\nv_add_f32 v{vL}, v{vL}, v{X+2}')
        A('s_waitcnt vmcnt(24)')
        def perms(d):
            tt = T + 4 * (d & 1)
            for q in range(4):
                A(f'v_perm_b32 v{tt+q}, v{Vb+4*(2*q+1)+(d>>1)}, v{Vb+4*(2*q)+(d>>1)}, s{sSEL1 if d & 1 else sSEL0}')
        perms(0)
        for d in range(8):
            if d + 1 < 8: perms(d + 1)
            tt = T + 4 * (d & 1)
            A(f'v_mfma_f32_16x16x32_bf16 v[{O+4*d}:{O+4*d+3}], v[{tt}:{tt+3}], v[{P}:{P+3}], v[{O+4*d}:{O+4*d+3}]')
        for e in range(8): A(vload(Vb, e, sT0))
    A('L_sloop:')
    block(KA, VA, sCURA)
    block(KB, VB, sCURB)
    A('s_branch L_sloop')
    A('L_sdone:')
    g_allreduce([vL], [X], 'v_add_f32')
    A(f'v_and_b32 v{X}, 15, v0\nv_lshlrev_b32 v{X+1}, 5, v{X}\ns_lshl_b32 s{sT0}, s3, 2\nv_add_u32 v{X+1}, s{sT0}, v{X+1}')
    A(f'v_lshlrev_b32 v{X+2}, 9, v{X}\nv_lshrrev_b32 v{X+3}, 4, v0\nv_lshl_add_u32 v{X+2}, v{X+3}, 4, v{X+2}\ns_lshl_b32 s{sT0}, s3, 11\nv_add_u32 v{X+2}, s{sT0}, v{X+2}')
    A(f's_mov_b64 exec, 0xf\nds_write_b32 v{X+1}, v{vM} offset:{L_ML}\nds_write_b32 v{X+1}, v{vL} offset:{L_ML+128}')
    A(f's_mov_b32 exec_lo, 0x000f000f\ns_mov_b32 exec_hi, 0x000f000f')
    for d in range(8): A(f'ds_write_b128 v{X+2}, v[{O+4*d}:{O+4*d+3}] offset:{L_MRG+64*d}')
    A('s_mov_b64 exec, -1\ns_waitcnt vmcnt(0) lgkmcnt(0)')
    A('s_branch L_tail')

    A('L_helper:')
    vZ, vL16, vEP, vW1, vW2 = 1, 2, 3, 4, 5
    XR = 8; CR = 16
    FA = 64; FB = 128
    LN = 24
    TM = 40
    D = 192
    A(f'v_mov_b32 v{vZ}, 0\nv_lshlrev_b32 v{vL16}, 4, v0')
    A(f'buffer_load_dword v{vEP}, v{vZ}, s[16:19], 0 offen sc1')
    srd(24, P_X, 2048)
    A(f'buffer_load_dwordx4 v[{XR}:{XR+3}], v{vL16}, s[24:27], 0 offen\nbuffer_load_dwordx4 v[{XR+4}:{XR+7}], v{vL16}, s[24:27], 0 offen offset:1024')
    srd(28, P_C, 2048)
    srd(20, P_WMOD, 512 * 6144)
    srd(4, P_WQ, 512 * 8192)
    sCBK = sCURA
    A(f's_lshr_b32 s{sT0}, s{sIDX}, 2\ns_lshl_b32 s{sT0}, s{sT0}, 5\ns_lshl_b32 s{sT1}, s{sXCD}, 2\ns_add_u32 s{sT0}, s{sT0}, s{sT1}\ns_and_b32 s{sT1}, s{sIDX}, 3\ns_add_u32 s{sCBK}, s{sT0}, s{sT1}')
    A(f'v_lshrrev_b32 v{TM}, 1, v0\nv_and_b32 v{TM+1}, 1, v0\nv_lshlrev_b32 v{TM+1}, 4, v{TM+1}')
    A(f'v_mul_u32_u24 v{vW1}, 6144, v{TM}\nv_add_u32 v{vW1}, v{vW1}, v{TM+1}\nv_lshl_add_u32 v{vW2}, v{TM}, 13, v{TM+1}')
    vTR, vAR = 6, 7
    A(f'v_lshrrev_b32 v{TM}, 4, v0\nv_lshlrev_b32 v{vTR}, 8, v{TM}\nv_bfe_u32 v{TM+1}, v0, 2, 2\nv_lshl_add_u32 v{vTR}, v{TM+1}, 5, v{vTR}\nv_and_b32 v{TM+1}, 3, v0\nv_lshl_add_u32 v{vTR}, v{TM+1}, 3, v{vTR}')
    A(f'v_and_b32 v{TM+1}, 1, v0\nv_mul_u32_u24 v{vAR}, {AS}, v{TM+1}\nv_lshl_add_u32 v{vAR}, v{TM}, 4, v{vAR}')
    A(f's_cmp_ge_u32 s{sIDX}, 24\ns_cbranch_scc1 L_nop1')
    A(f'buffer_load_dwordx4 v[{CR}:{CR+3}], v{vL16}, s[28:31], 0 offen\nbuffer_load_dwordx4 v[{CR+4}:{CR+7}], v{vL16}, s[28:31], 0 offen offset:1024')
    A(f's_lshl_b32 s{sT2}, s{sCBK}, 5')
    dma_loop(20, vW1, sT2, 32 * 6144, 16, L_W1)
    A(f's_lshl_b32 s{sT2}, s{sCBK}, 5')
    dma_loop(4, vW2, sT2, 32 * 8192, 16, L_W2)
    stamp('issued')
    A('s_waitcnt vmcnt(32)')
    stamp('cland')
    A(f'v_readfirstlane_b32 s{sTAG}, v{vEP}\ns_add_u32 s{sTAG}, s{sTAG}, 0x9e3779b9')
    for b in range(2):
        for i in range(4): unpack(TM + 2 * i, TM + 2 * i + 1, CR + 4 * b + i)
        for i in range(8): A(f'v_mul_f32 v{TM+8+i}, s{sLOG2E}, v{TM+i}')
        for i in range(8): A(f'v_exp_f32 v{TM+8+i}, -v{TM+8+i}')
        for i in range(8): A(f'v_add_f32 v{TM+8+i}, 1.0, v{TM+8+i}')
        for i in range(8): A(f'v_rcp_f32 v{TM+8+i}, v{TM+8+i}')
        for i in range(8): A(f'v_mul_f32 v{TM+i}, v{TM+i}, v{TM+8+i}')
        for i in range(4): A(f'v_cvt_pk_bf16_f32 v{CR+4*b+i}, v{TM+2*i}, v{TM+2*i+1}')
        A(f'ds_write_b128 v{vL16}, v[{CR+4*b}:{CR+4*b+3}] offset:{L_ACT+b*AS}')
    A('s_waitcnt lgkmcnt(0)')
    for t in range(16): A(f'ds_read_b128 v[{FA+4*t}:{FA+4*t+3}], v{vAR} offset:{L_ACT+64*t}')
    stamp('silu')
    A('s_waitcnt vmcnt(16)')
    stamp('w1land')
    for t in range(16):
        A(f'ds_read_b64_tr_b16 v[{FB+4*t}:{FB+4*t+1}], v{vTR} offset:{L_W1+1024*t}\nds_read_b64_tr_b16 v[{FB+4*t+2}:{FB+4*t+3}], v{vTR} offset:{L_W1+1024*t+128}')
    A('s_waitcnt lgkmcnt(0)')
    for t in range(16):
        A(f'v_mfma_f32_16x16x32_bf16 v[{D}:{D+3}], v[{FA+4*t}:{FA+4*t+3}], v[{FB+4*t}:{FB+4*t+3}], ' + ('0' if t == 0 else f'v[{D}:{D+3}]'))
    A(f'v_lshlrev_b32 v{TM}, 3, v0\nv_mov_b32 v{TM+3}, s{sTAG}\ns_lshl_b32 s{sT0}, s{sCBK}, 7\ns_add_u32 s{sT0}, s{sT0}, {MODG}')
    A(f'v_cvt_pk_bf16_f32 v{TM+2}, v{D}, v{D+1}')
    A(f's_mov_b64 exec, 0xffff\nbuffer_store_dwordx2 v[{TM+2}:{TM+3}], v{TM}, s[16:19], s{sT0} offen sc1\ns_mov_b64 exec, -1')
    A('s_branch L_p1done')
    A('L_nop1:')
    A(f's_lshl_b32 s{sT2}, s{sCBK}, 5')
    dma_loop(4, vW2, sT2, 32 * 8192, 16, L_W2)
    A('s_waitcnt vmcnt(16)')
    A(f'v_readfirstlane_b32 s{sTAG}, v{vEP}\ns_add_u32 s{sTAG}, s{sTAG}, 0x9e3779b9')
    A('L_p1done:')
    stamp('p1done')
    for i in range(8): unpack(LN + 2 * i, LN + 2 * i + 1, XR + i)
    for b in range(2):
        A(f'v_add_f32 v{TM+b}, v{LN+8*b}, v{LN+8*b+1}')
        for i in range(2, 8): A(f'v_add_f32 v{TM+b}, v{TM+b}, v{LN+8*b+i}')
    allreduce([TM, TM + 1], [TM + 2, TM + 3])
    for b in range(2): A(f'v_mul_f32 v{TM+b}, 0x3b000000, v{TM+b}')
    for b in range(2):
        for i in range(8):
            A(f'v_sub_f32 v{TM+6}, v{LN+8*b+i}, v{TM+b}')
            A(f'v_mul_f32 v{TM+4+b}, v{TM+6}, v{TM+6}' if i == 0 else f'v_fmac_f32 v{TM+4+b}, v{TM+6}, v{TM+6}')
    allreduce([TM + 4, TM + 5], [TM + 2, TM + 3])
    def ln_fin(mean, var, den, rden):
        A(f'v_mul_f32 v{var}, 0x3b000000, v{var}')
        rnd(mean, mean); rnd(var, var)
        A(f'v_add_f32 v{var}, 0x3727c5ac, v{var}')
        rnd(var, var)
        A(f'v_sqrt_f32 v{den}, v{var}')
        rnd(den, den)
        A(f'v_rcp_f32 v{rden}, v{den}')
    for b in range(2):
        ln_fin(TM + b, TM + 4 + b, TM + 6 + b, TM + 8 + b)
        for i in range(8):
            r = LN + 8 * b + i
            A(f'v_sub_f32 v{r}, v{r}, v{TM+b}')
            rnd(r, r)
            div(TM + 10, r, TM + 6 + b, TM + 8 + b, TM + 11)
            rnd(r, TM + 10)
    stamp('lnx')
    A('s_waitcnt vmcnt(0)')
    stamp('w2land')
    for t in range(16):
        A(f'ds_read_b64_tr_b16 v[{FB+4*t}:{FB+4*t+1}], v{vTR} offset:{L_W2+1024*t}\nds_read_b64_tr_b16 v[{FB+4*t+2}:{FB+4*t+3}], v{vTR} offset:{L_W2+1024*t+128}')
    G = 64
    vG = 3
    A(f'v_lshlrev_b32 v{vG}, 6, v0\ns_mov_b32 s{sT0}, {MODG}\ns_mov_b32 s{sT1}, {MODG+4096}')
    def lds_():
        for q in range(4): A(f'buffer_load_dwordx4 v[{G+4*q}:{G+4*q+3}], v{vG}, s[16:19], s{sT0} offen offset:{16*q} sc1')
        for q in range(4): A(f'buffer_load_dwordx4 v[{G+16+4*q}:{G+16+4*q+3}], v{vG}, s[16:19], s{sT1} offen offset:{16*q} sc1')
    poll_simple(lds_, [G + 2 * i + 1 for i in range(16)], TM, TM + 1)
    stamp('sagath')
    for i in range(8):
        unpack(TM, TM + 1, G + 16 + 2 * i)
        A(f'v_add_f32 v{TM}, 1.0, v{TM}\nv_add_f32 v{TM+1}, 1.0, v{TM+1}')
        rnd2(TM, TM + 1, TM, TM + 1, TM + 2)
        A(f'v_mul_f32 v{TM}, v{TM}, v{LN+i}\nv_mul_f32 v{TM+1}, v{TM+1}, v{LN+8+i}')
        rnd2(TM, TM + 1, TM, TM + 1, TM + 2)
        unpack(TM + 2, TM + 3, G + 2 * i)
        A(f'v_add_f32 v{LN+i}, v{TM}, v{TM+2}\nv_add_f32 v{LN+8+i}, v{TM+1}, v{TM+3}')
    for b in range(2):
        for i in range(4): A(f'v_cvt_pk_bf16_f32 v{TM+4+4*b+i}, v{LN+8*b+2*i}, v{LN+8*b+2*i+1}')
        A(f'ds_write_b128 v{vL16}, v[{TM+4+4*b}:{TM+7+4*b}] offset:{L_ACT+b*AS}')
    A('s_waitcnt lgkmcnt(0)')
    for t in range(16): A(f'ds_read_b128 v[{FA+4*t}:{FA+4*t+3}], v{vAR} offset:{L_ACT+64*t}')
    A('s_waitcnt lgkmcnt(0)')
    for t in range(16):
        A(f'v_mfma_f32_16x16x32_bf16 v[{D}:{D+3}], v[{FA+4*t}:{FA+4*t+3}], v[{FB+4*t}:{FB+4*t+3}], ' + ('0' if t == 0 else f'v[{D}:{D+3}]'))
    A(f'v_lshlrev_b32 v{TM}, 3, v0\nv_mov_b32 v{TM+3}, s{sTAG}\ns_lshl_b32 s{sT0}, s{sCBK}, 7\ns_add_u32 s{sT0}, s{sT0}, {QG}')
    A(f'v_cvt_pk_bf16_f32 v{TM+2}, v{D}, v{D+1}')
    A(f's_mov_b64 exec, 0xffff\nbuffer_store_dwordx2 v[{TM+2}:{TM+3}], v{TM}, s[16:19], s{sT0} offen sc1\ns_mov_b64 exec, -1')
    stamp('qpub')
    A(f's_lshl_b32 s{sT0}, s{sKVH}, 12\ns_add_u32 s{sT0}, s{sT0}, {QG}')
    def ldq():
        for q in range(4): A(f'buffer_load_dwordx4 v[{G+4*q}:{G+4*q+3}], v{vG}, s[16:19], s{sT0} offen offset:{16*q} sc1')
    poll_simple(ldq, [G + 2 * i + 1 for i in range(8)], TM, TM + 1)
    A(f's_cmp_eq_u32 s{sB}, 0\ns_cselect_b32 s{sT1}, s{sSEL0}, s{sSEL1}')
    for q in range(4): A(f'v_perm_b32 v{TM+4+q}, v{G+4*q+2}, v{G+4*q}, s{sT1}')
    A(f'ds_write_b128 v{vL16}, v[{TM+4}:{TM+7}] offset:{L_Q}')
    A(f'v_mov_b32 v{TM}, {2*NSTREAM}\nv_mov_b32 v{TM+1}, s{sTAG}\nds_write_b64 v{vZ}, v[{TM}:{TM+1}] offset:{L_MISC}')
    A('s_waitcnt lgkmcnt(0)\ns_barrier')
    stamp('qready')
    srd(20, P_WO, 4096 * 1024)
    A(f'v_lshrrev_b32 v{TM}, 2, v0\nv_lshlrev_b32 v{TM}, 10, v{TM}\nv_and_b32 v{TM+1}, 3, v0\nv_lshl_add_u32 v{vW1}, v{TM+1}, 4, v{TM}')
    A(f's_lshl_b32 s{sT2}, s{sKVH}, 19\ns_lshl_b32 s{sT0}, s{sSPL}, 6\ns_add_u32 s{sT2}, s{sT2}, s{sT0}')
    if pf & 1: dma_loop(20, vW1, sT2, 16 * 1024, 32, L_WT1, pace=4)
    if not pf & 2: A('s_branch L_pfdone')
    A(f's_cmp_ge_u32 s{sIDX}, 14\ns_cbranch_scc1 L_not2')
    srd(4, P_WG, 512 * 3584)
    srd(24, P_WU, 512 * 3584)
    A(f'v_lshrrev_b32 v{TM}, 1, v0\nv_mul_u32_u24 v{TM}, 3584, v{TM}\nv_and_b32 v{TM+1}, 1, v0\nv_lshl_add_u32 v{vW2}, v{TM+1}, 4, v{TM}')
    A(f's_mul_i32 s{sT0}, s{sXCD}, 14\ns_add_u32 s{sT0}, s{sT0}, s{sIDX}\ns_lshl_b32 s{sT2}, s{sT0}, 5')
    dma_loop(4, vW2, sT2, 32 * 3584, 16, L_WT2, pace=4)
    A(f's_lshl_b32 s{sT2}, s{sT0}, 5')
    dma_loop(24, vW2, sT2, 32 * 3584, 16, L_WT2 + 16384, pace=4)
    A('s_branch L_pfdone')
    A('L_not2:')
    A(f's_cmp_ge_u32 s{sIDX}, 18\ns_cbranch_scc1 L_pfdone')
    srd(4, P_WD, 1792 * 1024)
    A(f'v_lshrrev_b32 v{TM}, 1, v0\nv_lshlrev_b32 v{TM}, 10, v{TM}\nv_and_b32 v{TM+1}, 1, v0\nv_lshl_add_u32 v{vW2}, v{TM+1}, 4, v{TM}')
    A(f's_lshl_b32 s{sT0}, s{sXCD}, 2\ns_add_u32 s{sT0}, s{sT0}, s{sIDX}\ns_sub_u32 s{sT0}, s{sT0}, 14\ns_lshl_b32 s{sT2}, s{sT0}, 5')
    dma_loop(4, vW2, sT2, 32 * 1024, 56, L_WT2, pace=4)
    A('L_pfdone:')
    A(f'v_lshlrev_b32 v{TM}, 5, v0\nv_mov_b32 v{TM+1}, 0xff800000\ns_mov_b64 exec, 0xf')
    A(f'ds_write_b32 v{TM}, v{TM+1} offset:{L_ML}\nds_write_b32 v{TM}, v{vZ} offset:{L_ML+128}\ns_mov_b64 exec, -1')
    A('s_waitcnt vmcnt(0) lgkmcnt(0)')

    A('L_tail:')
    A('s_barrier')
    stamp('sdone')
    sH = sCURA; sCB = sCURB
    a0, a1, a2, a3 = 1, 2, 3, 4
    MM = 8; LL = 16; OO = 24; W = 32; R = 40
    A(f's_lshr_b32 s{sH}, s3, 1\ns_lshl_b32 s{sT0}, s{sH}, 5\nv_mov_b32 v{a0}, s{sT0}')
    A(f's_lshl_b32 s{sT0}, s3, 8\nv_lshlrev_b32 v{a1}, 2, v0\nv_add_u32 v{a1}, s{sT0}, v{a1}')
    A(f'ds_read_b128 v[{MM}:{MM+3}], v{a0} offset:{L_ML}\nds_read_b128 v[{MM+4}:{MM+7}], v{a0} offset:{L_ML+16}')
    A(f'ds_read_b128 v[{LL}:{LL+3}], v{a0} offset:{L_ML+128}\nds_read_b128 v[{LL+4}:{LL+7}], v{a0} offset:{L_ML+144}')
    for v in range(1, 8): A(f'ds_read_b32 v{OO+v}, v{a1} offset:{L_MRG+2048*v}')
    A(f's_lshl_b32 s{sT1}, s{sGRP}, 4\ns_add_u32 s{sT1}, s{sT1}, s{sSPL}')
    A(f's_lshl_b32 s{sT2}, s{sT1}, 12\ns_add_u32 s{sT2}, s{sT2}, {PART}')
    A(f'v_lshlrev_b32 v{a2}, 1, v{a1}')
    A(f's_lshl_b32 s{sT3}, s{sT1}, 7\ns_add_u32 s{sT3}, s{sT3}, {LSEG}\ns_lshl_b32 s{sT0}, s{sH}, 3\ns_add_u32 s{sT3}, s{sT3}, s{sT0}')
    A('s_waitcnt lgkmcnt(0)')
    A(f'v_max3_f32 v{R}, v{MM+1}, v{MM+2}, v{MM+3}\nv_max3_f32 v{R}, v{R}, v{MM+4}, v{MM+5}\nv_max3_f32 v{R}, v{R}, v{MM+6}, v{MM+7}')
    A(f'v_mul_f32 v{R}, s{sLOG2E}, v{R}')
    for v in range(1, 8): A(f'v_fma_f32 v{W+v}, v{MM+v}, s{sLOG2E}, -v{R}')
    for v in range(1, 8): A(f'v_exp_f32 v{W+v}, v{W+v}')
    A(f'v_mul_f32 v{R+1}, v{W+1}, v{LL+1}\nv_mul_f32 v{R+2}, v{W+1}, v{OO+1}')
    for v in range(2, 8): A(f'v_fmac_f32 v{R+1}, v{W+v}, v{LL+v}\nv_fmac_f32 v{R+2}, v{W+v}, v{OO+v}')
    A(f'v_rcp_f32 v{R+3}, v{R+1}\nv_log_f32 v{R+6}, v{R+1}\nv_mov_b32 v{R+5}, s{sTAG}\nv_mov_b32 v{R+7}, s{sTAG}')
    A(f'v_mul_f32 v{R+4}, v{R+2}, v{R+3}\nv_add_f32 v{R+6}, v{R+6}, v{R}')
    A(f'buffer_store_dwordx2 v[{R+4}:{R+5}], v{a2}, s[16:19], s{sT2} offen sc1')
    lb = A.lab('nolse')
    A(f's_bitcmp1_b32 s3, 0\ns_cbranch_scc1 {lb}')
    A(f'v_mov_b32 v{a3}, 0\ns_mov_b64 exec, 1\nbuffer_store_dwordx2 v[{R+6}:{R+7}], v{a3}, s[16:19], s{sT3} offen sc1\ns_mov_b64 exec, -1')
    A(f'{lb}:')
    stamp('ppub')
    B1 = 96; B2 = 112
    A(f'v_lshrrev_b32 v{R}, 4, v0\nv_and_b32 v{R+1}, 1, v{R}\nv_lshlrev_b32 v{R+1}, 6, v{R+1}\nv_lshrrev_b32 v{R+2}, 1, v{R}\nv_add_u32 v{R+1}, v{R+1}, v{R+2}')
    A(f'v_bfe_u32 v{R+2}, v0, 2, 2\nv_lshl_add_u32 v{R+1}, v{R+2}, 3, v{R+1}')
    A(f's_lshl_b32 s{sT0}, s{sH}, 7\ns_and_b32 s{sT1}, s3, 1\ns_lshl_b32 s{sT1}, s{sT1}, 2\ns_add_u32 s{sT0}, s{sT0}, s{sT1}\nv_add_u32 v{R+1}, s{sT0}, v{R+1}')
    A(f'v_lshlrev_b32 v{R+1}, 6, v{R+1}\nv_and_b32 v{R+3}, 3, v0\nv_lshl_add_u32 v{R+1}, v{R+3}, 3, v{R+1}\nv_add_u32 v{R+1}, {L_WT1}, v{R+1}')
    for t in range(2):
        for n in range(2):
            b = B1 + 4 * (2 * t + n)
            A(f'ds_read_b64_tr_b16 v[{b}:{b+1}], v{R+1} offset:{128*t+32*n}\nds_read_b64_tr_b16 v[{b+2}:{b+3}], v{R+1} offset:{128*t+32*n+2048}')
    vTR2 = 5
    A(f'v_lshlrev_b32 v{vTR2}, 8, v{R}\nv_lshl_add_u32 v{vTR2}, v{R+2}, 5, v{vTR2}\nv_lshl_add_u32 v{vTR2}, v{R+3}, 3, v{vTR2}\nv_add_u32 v{vTR2}, {L_WT2}, v{vTR2}')
    XV = 144
    A(f's_cmp_ge_u32 s{sIDX}, 14\ns_cbranch_scc1 L_e_not2')
    A(f's_lshl_b32 s{sT0}, s3, 11\nv_add_u32 v{vTR2}, s{sT0}, v{vTR2}')
    for t in range(2):
        for n in range(2):
            b = B2 + 4 * (2 * t + n)
            A(f'ds_read_b64_tr_b16 v[{b}:{b+1}], v{vTR2} offset:{1024*t+16384*n}\nds_read_b64_tr_b16 v[{b+2}:{b+3}], v{vTR2} offset:{1024*t+16384*n+128}')
    srd(24, P_X, 2048)
    A(f'v_lshrrev_b32 v{R+4}, 1, v{a1}')
    A(f'buffer_load_ushort v{XV}, v{R+4}, s[24:27], 0 offen\nbuffer_load_ushort v{XV+1}, v{R+4}, s[24:27], 0 offen offset:1024')
    A(f's_mov_b32 s{sT0}, {MODG+1024*8}\ns_mov_b32 s{sT1}, {MODG+1536*8}\ns_mov_b32 s{sT2}, {MODG+2048*8}')
    poll_pend([(f'buffer_load_dwordx2 v[{XV+2+2*k}:{XV+3+2*k}], v{a2}, s[16:19], s{s} offen sc1', XV + 3 + 2 * k) for k, s in enumerate((sT0, sT1, sT2))])
    A('s_branch L_e_done')
    A('L_e_not2:')
    A(f's_cmp_ge_u32 s{sIDX}, 18\ns_cbranch_scc1 L_e_done')
    A(f's_mul_i32 s{sT0}, s3, {224*32}\nv_add_u32 v{vTR2}, s{sT0}, v{vTR2}')
    for t in range(7):
        b = B2 + 4 * t
        A(f'ds_read_b64_tr_b16 v[{b}:{b+1}], v{vTR2} offset:{1024*t}\nds_read_b64_tr_b16 v[{b+2}:{b+3}], v{vTR2} offset:{1024*t+128}')
    vCOL = 6; vBO = 7
    A(f's_lshl_b32 s{sCB}, s{sXCD}, 2\ns_add_u32 s{sCB}, s{sCB}, s{sIDX}\ns_sub_u32 s{sCB}, s{sCB}, 14')
    A(f's_lshl_b32 s{sT0}, s{sCB}, 4\nv_and_b32 v{vCOL}, 15, v0\nv_add_u32 v{vCOL}, s{sT0}, v{vCOL}\nv_bfe_u32 v{vBO}, v0, 4, 1')
    srd(24, P_X, 2048)
    A(f'v_lshlrev_b32 v{R+4}, 9, v{vBO}\nv_add_u32 v{R+4}, v{R+4}, v{vCOL}\nv_lshlrev_b32 v{R+4}, 1, v{R+4}\nv_mov_b32 v{XV+8}, v{R+4}')
    A(f'buffer_load_ushort v{XV}, v{R+4}, s[24:27], 0 offen')
    A(f'v_lshlrev_b32 v{R+5}, 3, v{vCOL}')
    A(f's_mov_b32 s{sT0}, {MODG+1024*8}\ns_mov_b32 s{sT1}, {MODG+2560*8}')
    poll_pend([(f'buffer_load_dwordx2 v[{XV+2+2*k}:{XV+3+2*k}], v{R+5}, s[16:19], s{s} offen sc1', XV + 3 + 2 * k) for k, s in enumerate((sT0, sT1))])
    A('L_e_done:')
    stamp('early')
    G = 160
    A(f's_lshl_b32 s{sT2}, s{sGRP}, 16\ns_add_u32 s{sT2}, s{sT2}, {PART}')
    A(f'v_and_b32 v{R}, 15, v0\nv_lshlrev_b32 v{R}, 7, v{R}')
    A(f's_lshl_b32 s{sT3}, s{sGRP}, 11\ns_add_u32 s{sT3}, s{sT3}, {LSEG}\ns_lshl_b32 s{sT0}, s{sH}, 3\ns_add_u32 s{sT3}, s{sT3}, s{sT0}')
    AD = 194
    for p in range(16): A(f'v_add_u32 v{AD+p}, {4096*p}, v{a2}')
    items = [(f'buffer_load_dwordx2 v[{G+2*p}:{G+2*p+1}], v{AD+p}, s[16:19], s{sT2} offen sc1', G + 2 * p + 1) for p in range(16)]
    items.append((f'buffer_load_dwordx2 v[{G+32}:{G+33}], v{R}, s[16:19], s{sT3} offen sc1', G + 33))
    poll_pend(items)
    stamp('t1gath')
    A(f'v_mov_b32 v{R}, v{G+32}')
    row_allreduce([R], 'v_max_f32')
    A(f'v_sub_f32 v{R}, v{G+32}, v{R}\nv_exp_f32 v{R}, v{R}\nv_mov_b32 v{R+1}, v{R}')
    row_allreduce([R + 1], 'v_add_f32')
    A(f'v_rcp_f32 v{R+1}, v{R+1}\nv_mul_f32 v{R}, v{R}, v{R+1}')
    SU = 4
    su = [4, 5, 6, 7] + list(range(20, 32))
    for p in range(16): A(f'v_readlane_b32 s{su[p]}, v{R}, {p}')
    A(f'v_mul_f32 v{R+2}, s{su[0]}, v{G}\nv_mul_f32 v{R+3}, s{su[1]}, v{G+2}')
    for p in range(2, 16): A(f'v_fmac_f32 v{R+2+(p&1)}, s{su[p]}, v{G+2*p}')
    A(f'v_add_f32 v{R+2}, v{R+2}, v{R+3}\nv_cvt_pk_bf16_f32 v{R+2}, v{R+2}, v{R+2}')
    stamp('t1comb')
    A(f'v_lshrrev_b32 v{R+4}, 1, v{a1}\nds_write_b16 v{R+4}, v{R+2} offset:{L_ACT}')
    A(f's_lshl_b32 s{sT0}, s3, 7\nv_lshrrev_b32 v{R+5}, 4, v0\nv_lshlrev_b32 v{R+5}, 4, v{R+5}\nv_add_u32 v{R+5}, s{sT0}, v{R+5}')
    A('s_waitcnt lgkmcnt(0)')
    FA2 = 48
    A(f'ds_read_b128 v[{FA2}:{FA2+3}], v{R+5} offset:{L_ACT}\nds_read_b128 v[{FA2+4}:{FA2+7}], v{R+5} offset:{L_ACT+64}')
    A('s_waitcnt lgkmcnt(0)')
    D0, D1 = 56, 60
    for t in range(2):
        for n in range(2):
            d = D0 + 4 * n; b = B1 + 4 * (2 * t + n)
            A(f'v_mfma_f32_16x16x32_bf16 v[{d}:{d+3}], v[{FA2+4*t}:{FA2+4*t+3}], v[{b}:{b+3}], ' + ('0' if t == 0 else f'v[{d}:{d+3}]'))
    A(f'v_lshlrev_b32 v{R+6}, 2, v0\nv_add_u32 v{R+6}, s{sT0}, v{R+6}\nv_cmp_gt_u32 vcc, 16, v0')
    A(f'v_cndmask_b32 v{R+7}, v{D1}, v{D0}, vcc')
    A(f's_mov_b64 exec, 0xffffffff\nds_write_b32 v{R+6}, v{R+7} offset:{L_RED}\ns_mov_b64 exec, -1')
    stamp('t1mfma')
    A('s_waitcnt lgkmcnt(0)\ns_barrier')
    stamp('t1bar')
    lb = A.lab('t1pub')
    A(f's_cmp_lg_u32 s3, 0\ns_cbranch_scc1 {lb}')
    A(f'v_lshlrev_b32 v{R+6}, 2, v0')
    for w in range(8): A(f'ds_read_b32 v{8+w}, v{R+6} offset:{L_RED+128*w}')
    A(f's_lshl_b32 s{sT0}, s{sGRP}, 12\ns_lshl_b32 s{sT1}, s{sSPL}, 8\ns_add_u32 s{sT0}, s{sT0}, s{sT1}\ns_add_u32 s{sT0}, s{sT0}, {T1G}')
    A(f'v_lshlrev_b32 v{R+6}, 3, v0\nv_mov_b32 v{17}, s{sTAG}')
    A('s_waitcnt lgkmcnt(0)')
    A('v_add_f32 v8, v8, v9\nv_add_f32 v10, v10, v11\nv_add_f32 v12, v12, v13\nv_add_f32 v14, v14, v15\nv_add_f32 v8, v8, v10\nv_add_f32 v12, v12, v14\nv_add_f32 v16, v8, v12')
    A(f's_mov_b64 exec, 0xffffffff\nbuffer_store_dwordx2 v[16:17], v{R+6}, s[16:19], s{sT0} offen sc1\ns_mov_b64 exec, -1')
    A(f'{lb}:')
    stamp('t1pub')
    A(f's_cmp_ge_u32 s{sIDX}, 18\ns_cbranch_scc1 L_fin')
    A(f's_cmp_ge_u32 s{sIDX}, 14\ns_cbranch_scc1 L_t3')
    A(f's_mov_b32 s{sT2}, {T1G}')
    items = [(f'buffer_load_dwordx2 v[{G+2*p}:{G+2*p+1}], v{AD+p}, s[16:19], s{sT2} offen sc1', G + 2 * p + 1) for p in range(16)]
    poll_pend(items)
    stamp('t23gath')
    X2 = 8
    def x2calc(dst, gs, xr, ga, t):
        A(f'v_add_f32 v{t}, v{gs[0]}, v{gs[1]}\nv_add_f32 v{t+1}, v{gs[2]}, v{gs[3]}')
        A(f'v_add_f32 v{t}, v{t}, v{gs[4]}\nv_add_f32 v{t+1}, v{t+1}, v{gs[5]}\nv_add_f32 v{t}, v{t}, v{gs[6]}\nv_add_f32 v{t+1}, v{t+1}, v{gs[7]}\nv_add_f32 v{t}, v{t}, v{t+1}')
        rnd(t, t)
        A(f'v_mul_f32 v{t}, v{t}, v{ga}')
        rnd(t, t)
        A(f'v_lshlrev_b32 v{t+1}, 16, v{xr}\nv_add_f32 v{t}, v{t}, v{t+1}')
        rnd(dst, t)
    unpack(10, 11, XV + 2)
    for b in range(2): x2calc(X2 + b, [G + 2 * (8 * b + k) for k in range(8)], XV + b, 10 + b, 12 + 2 * b)
    A(f'v_mov_b32 v16, v{X2}\nv_mov_b32 v17, v{X2+1}')
    allreduce([16, 17], [18, 19])
    A(f'v_mul_f32 v20, 0x3c800000, v16\nv_mul_f32 v21, 0x3c800000, v17')
    A(f'v_sub_f32 v20, v{X2}, v20\nv_sub_f32 v21, v{X2+1}, v21\nv_mul_f32 v18, v20, v20\nv_mul_f32 v19, v21, v21')
    allreduce([18, 19], [20, 21])
    A(f's_lshl_b32 s{sT0}, s3, 4\nv_mov_b32 v20, s{sT0}\ns_mov_b64 exec, 1\nds_write_b128 v20, v[16:19] offset:{L_STAT}\ns_mov_b64 exec, -1')
    stamp('t2stat')
    A('v_mov_b32 v20, 0\ns_waitcnt lgkmcnt(0)\ns_barrier')
    stamp('t2bar1')
    ST = 64
    for w in range(8): A(f'ds_read_b128 v[{ST+4*w}:{ST+4*w+3}], v20 offset:{L_STAT+16*w}')
    lb = A.lab('noep')
    A(f's_or_b32 s{sT0}, s2, s3\ns_cmp_lg_u32 s{sT0}, 0\ns_cbranch_scc1 {lb}')
    A(f'v_mov_b32 v21, s{sTAG}\ns_mov_b64 exec, 1\nbuffer_store_dword v21, v20, s[16:19], 0 offen sc1\ns_mov_b64 exec, -1')
    A(f'{lb}:')
    A('s_waitcnt lgkmcnt(0)')
    for b in range(2):
        mean, var = 16 + b, 18 + b
        A(f'v_add_f32 v{mean}, v{ST+b}, v{ST+4+b}\nv_add_f32 v{var}, v{ST+2+b}, v{ST+6+b}')
        for w in range(2, 8): A(f'v_add_f32 v{mean}, v{mean}, v{ST+4*w+b}\nv_add_f32 v{var}, v{var}, v{ST+4*w+2+b}')
        A(f'v_mul_f32 v{mean}, 0x3b000000, v{mean}')
        A(f'v_mov_b32 v22, 0x3c800000\nv_mov_b32 v24, 0')
        for w in range(8): A(f'v_fma_f32 v23, v{ST+4*w+b}, v22, -v{mean}\nv_fmac_f32 v24, v23, v23')
        A(f'v_mov_b32 v22, 0x42800000\nv_fmac_f32 v{var}, v22, v24')
        ln_fin(mean, var, 26 + b, 28 + b)
        A(f'v_sub_f32 v{30+b}, v{X2+b}, v{mean}')
        rnd(30 + b, 30 + b)
        div(32 + b, 30 + b, 26 + b, 28 + b, 22)
        rnd(32 + b, 32 + b)
    unpack(10, 11, XV + 6)
    A('v_add_f32 v10, 1.0, v10\nv_add_f32 v11, 1.0, v11')
    rnd2(10, 11, 10, 11, 12)
    A('v_mul_f32 v10, v10, v32\nv_mul_f32 v11, v11, v33')
    rnd2(10, 11, 10, 11, 12)
    unpack(12, 13, XV + 4)
    A('v_add_f32 v10, v10, v12\nv_add_f32 v11, v11, v13\nv_cvt_pk_bf16_f32 v10, v10, v11')
    A(f'ds_write_b16 v{R+4}, v10 offset:{L_ACT}\nds_write_b16_d16_hi v{R+4}, v10 offset:{L_ACT+AS}')
    A(f'v_and_b32 v12, 1, v0\nv_mul_u32_u24 v12, {AS}, v12\nv_add_u32 v12, v12, v{R+5}')
    A('s_waitcnt lgkmcnt(0)')
    A(f'ds_read_b128 v[{FA2}:{FA2+3}], v12 offset:{L_ACT}\nds_read_b128 v[{FA2+4}:{FA2+7}], v12 offset:{L_ACT+64}')
    A('s_waitcnt lgkmcnt(0)')
    for t in range(2):
        for n in range(2):
            d = D0 + 4 * n; b = B2 + 4 * (2 * t + n)
            A(f'v_mfma_f32_16x16x32_bf16 v[{d}:{d+3}], v[{FA2+4*t}:{FA2+4*t+3}], v[{b}:{b+3}], ' + ('0' if t == 0 else f'v[{d}:{d+3}]'))
    A(f'v_and_b32 v12, 16, v0\nv_cmp_eq_u32 vcc, 0, v12\nv_cmp_gt_u32 s[4:5], 32, v0')
    A(f'v_cndmask_b32 v13, v{D0+1}, v{D0}, vcc\nv_cndmask_b32 v14, v{D1+1}, v{D1}, vcc\nv_cndmask_b32 v13, v14, v13, s[4:5]')
    A(f'ds_write_b32 v{a1}, v13 offset:{L_RED2}')
    stamp('t23mfma')
    A('s_waitcnt lgkmcnt(0)\ns_barrier')
    stamp('t23bar')
    A('s_cmp_lg_u32 s3, 0\ns_cbranch_scc1 L_fin')
    for w in range(8): A(f'ds_read_b32 v{8+w}, v{a1} offset:{L_RED2+256*w}')
    A(f's_mul_i32 s{sT0}, s{sXCD}, 14\ns_add_u32 s{sT0}, s{sT0}, s{sIDX}\ns_lshl_b32 s{sT0}, s{sT0}, 7\ns_add_u32 s{sT0}, s{sT0}, {HHG}')
    A(f'v_lshlrev_b32 v20, 3, v0\nv_mov_b32 v19, s{sTAG}')
    A('s_waitcnt lgkmcnt(0)')
    A('v_add_f32 v8, v8, v9\nv_add_f32 v10, v10, v11\nv_add_f32 v12, v12, v13\nv_add_f32 v14, v14, v15\nv_add_f32 v8, v8, v10\nv_add_f32 v12, v12, v14\nv_add_f32 v8, v8, v12')
    rnd(8, 8)
    A('v_mul_f32 v9, v8, v8\nv_mul_f32 v9, v9, v8\nv_mov_b32 v10, 0x3d372713\nv_fma_f32 v9, v9, v10, v8')
    import math, struct
    c = -2.0 * math.log2(math.e) * math.sqrt(2.0 / math.pi)
    A(f'v_mul_f32 v9, 0x{struct.unpack("<I", struct.pack("<f", c))[0]:08x}, v9\nv_exp_f32 v9, v9\nv_add_f32 v9, 1.0, v9\nv_rcp_f32 v9, v9\nv_mul_f32 v9, v9, v8')
    rnd(9, 9)
    A('v_mov_b32 v10, v8\nv_permlane32_swap_b32 v8, v10')
    A('v_mul_f32 v9, v9, v10\nv_mov_b32 v11, v9\nv_permlane16_swap_b32 v9, v11')
    A('v_cvt_pk_bf16_f32 v18, v9, v11')
    A(f's_mov_b64 exec, 0xffff\nbuffer_store_dwordx2 v[18:19], v20, s[16:19], s{sT0} offen sc1\ns_mov_b64 exec, -1')
    stamp('t2pub')
    A('s_branch L_fin')
    A('L_t3:')
    lb = A.lab('nox2')
    A(f's_cmp_lg_u32 s3, 0\ns_cbranch_scc1 {lb}')
    A(f'v_lshlrev_b32 v8, 15, v{vBO}\nv_lshl_add_u32 v8, v{vCOL}, 3, v8\ns_mov_b32 s{sT2}, {T1G}')
    for k in range(8): A(f'v_add_u32 v{AD+k}, {4096*k}, v8')
    poll_pend([(f'buffer_load_dwordx2 v[{G+2*p}:{G+2*p+1}], v{AD+p}, s[16:19], s{sT2} offen sc1', G + 2 * p + 1) for p in range(8)])
    A(f'v_cmp_eq_u32 vcc, 0, v{vBO}')
    unpack(10, 11, XV + 2)
    A('v_cndmask_b32 v10, v11, v10, vcc')
    unpack(12, 13, XV + 4)
    A(f'v_cndmask_b32 v{XV+7}, v13, v12, vcc')
    x2calc(XV + 6, [G + 2 * k for k in range(8)], XV, 10, 12)
    A(f'{lb}:')
    A(f's_mul_i32 s{sT2}, s3, {224*8}\ns_add_u32 s{sT2}, s{sT2}, {HHG}\nv_min_u32 v8, 55, v0\nv_lshlrev_b32 v9, 3, v8\nv_lshlrev_b32 v8, 5, v8')
    def ldh():
        A(f'buffer_load_dwordx4 v[{G}:{G+3}], v8, s[16:19], s{sT2} offen sc1\nbuffer_load_dwordx4 v[{G+4}:{G+7}], v8, s[16:19], s{sT2} offen offset:16 sc1')
    poll_simple(ldh, [G + 1, G + 3, G + 5, G + 7], 10, 11)
    stamp('t23gath')
    A(f'v_perm_b32 v12, v{G+2}, v{G}, s{sSEL0}\nv_perm_b32 v13, v{G+6}, v{G+4}, s{sSEL0}\nv_perm_b32 v14, v{G+2}, v{G}, s{sSEL1}\nv_perm_b32 v15, v{G+6}, v{G+4}, s{sSEL1}')
    A(f's_mul_i32 s{sT0}, s3, 448\nv_add_u32 v9, s{sT0}, v9')
    A(f'ds_write_b64 v9, v[12:13] offset:{L_ACT}\nds_write_b64 v9, v[14:15] offset:{L_ACT+AS}')
    A(f'v_and_b32 v12, 1, v0\nv_mul_u32_u24 v12, {AS}, v12\nv_lshrrev_b32 v13, 4, v0\nv_lshl_add_u32 v12, v13, 4, v12\nv_add_u32 v12, s{sT0}, v12')
    A('s_waitcnt lgkmcnt(0)')
    FA3 = 64
    for t in range(7): A(f'ds_read_b128 v[{FA3+4*t}:{FA3+4*t+3}], v12 offset:{L_ACT+64*t}')
    A('s_waitcnt lgkmcnt(0)')
    for t in range(7):
        A(f'v_mfma_f32_16x16x32_bf16 v[{D0}:{D0+3}], v[{FA3+4*t}:{FA3+4*t+3}], v[{B2+4*t}:{B2+4*t+3}], ' + ('0' if t == 0 else f'v[{D0}:{D0+3}]'))
    A(f'v_and_b32 v12, 16, v0\nv_cmp_eq_u32 vcc, 0, v12')
    A(f'v_cndmask_b32 v13, v{D0+1}, v{D0}, vcc')
    A(f'ds_write_b32 v{a1}, v13 offset:{L_RED2}')
    stamp('t23mfma')
    A('s_waitcnt lgkmcnt(0)\ns_barrier')
    stamp('t23bar')
    A('s_cmp_lg_u32 s3, 0\ns_cbranch_scc1 L_fin')
    for w in range(8): A(f'ds_read_b32 v{8+w}, v{a1} offset:{L_RED2+256*w}')
    srd(24, P_OUT, 2048)
    A('s_waitcnt lgkmcnt(0)')
    A('v_add_f32 v8, v8, v9\nv_add_f32 v10, v10, v11\nv_add_f32 v12, v12, v13\nv_add_f32 v14, v14, v15\nv_add_f32 v8, v8, v10\nv_add_f32 v12, v12, v14\nv_add_f32 v8, v8, v12')
    rnd(8, 8)
    A(f'v_mul_f32 v8, v8, v{XV+7}')
    rnd(8, 8)
    A(f'v_add_f32 v8, v8, v{XV+6}\nv_cvt_pk_bf16_f32 v8, v8, v8')
    A(f's_mov_b64 exec, 0xffffffff\nbuffer_store_short v8, v{XV+8}, s[24:27], 0 offen\ns_mov_b64 exec, -1')
    A('L_fin:')
    if stamps:
        A('s_cmp_lg_u32 s3, 0\ns_cbranch_scc1 L_end')
        A('s_waitcnt vmcnt(0)')
        A(f's_memrealtime s[4:5]\ns_waitcnt lgkmcnt(0)')
        A(f's_add_u32 s24, s{P_WS}, {STAMP_OFF}\ns_addc_u32 s25, s{P_WS+1}, 0\ns_mov_b32 s26, 0x100000\ns_mov_b32 s27, 0x20000')
        A(f's_mul_i32 s6, s2, 96\nv_mov_b32 v1, s6\ns_mov_b64 exec, 1')
        for i in range(11):
            A(f'v_mov_b32 v2, s{sST+2*i}\nv_mov_b32 v3, s{sST+2*i+1}\nbuffer_store_dwordx2 v[2:3], v1, s[24:27], 0 offen offset:{8*i}\ns_nop 1')
        A(f'v_mov_b32 v2, s4\nv_mov_b32 v3, s5\nbuffer_store_dwordx2 v[2:3], v1, s[24:27], 0 offen offset:88')
    A('L_end:\ns_endpgm')
    body, n = A.text()
    hdr = open('cdna_kernels/' + NAME + '.s.ref').read().split('; Override')[0]
    src = hdr + f'''; @launch grid=(256,1,1) block=(512,1,1) lds={LDS_TOTAL}
.amdgcn_target "amdgcn-amd-amdhsa--gfx950"
.text
.globl {NAME}_kernel
.p2align 8
.type {NAME}_kernel,@function
''' + body + f'''.section .rodata,"a"
.p2align 6
.amdhsa_kernel {NAME}_kernel
  .amdhsa_next_free_vgpr 224
  .amdhsa_next_free_sgpr 102
  .amdhsa_accum_offset 224
  .amdhsa_group_segment_fixed_size 0
  .amdhsa_kernarg_size 112
  .amdhsa_user_sgpr_count 2
  .amdhsa_user_sgpr_kernarg_segment_ptr 1
  .amdhsa_system_sgpr_workgroup_id_x 1
  .amdhsa_float_denorm_mode_32 3
.end_amdhsa_kernel
'''
    return src, n

ST_ALL = ['start', 'p1done', 'sagath', 'qpub', 'qready', 'sdone', 'ppub', 't1gath', 't1pub', 't23gath', 't2pub']
ST_PRE = ['start', 'karg', 'issued', 'cland', 'silu', 'w1land', 'p1done', 'lnx', 'w2land', 'sagath', 'qready']
ST_T1 = ['start', 'sdone', 'ppub', 'early', 't1gath', 't1comb', 't1mfma', 't1bar', 't1pub', 't23gath', 't2pub']
ST_T2 = ['start', 'sdone', 't1pub', 't23gath', 't2stat', 't2bar1', 't23mfma', 't23bar', 't2pub']
if __name__ == '__main__':
    s, n = gen()
    open('k1.s', 'w').write(s); print('nops inserted', n, 'lines', s.count('\n'))
    for name, kw in [('pre_nopre', dict(prestream=False, stamps=ST_PRE)), ('pre', dict(stamps=ST_PRE)), ('t1', dict(stamps=ST_T1)), ('t2', dict(stamps=ST_T2))]:
        s, n = gen(**kw)
        open(f'k1_{name}_st.s', 'w').write(s.replace('; @launch', '; stamps: ' + ' '.join(kw['stamps']) + '\n; @launch', 1))
```
